```python
import torch

def _softmax(x, axis=-1):
    return torch.softmax(x, dim=axis)
def _gelu(x):
    return torch.nn.functional.gelu(x, approximate="tanh")
def _silu(x):
    return torch.nn.functional.silu(x)
def _sigmoid(x):
    return torch.sigmoid(x)
def _layernorm(x, axis=-1, eps=1e-5):
    m = x.mean(dim=axis, keepdim=True)
    v = x.var(dim=axis, keepdim=True, unbiased=False)
    return (x - m) / torch.sqrt(v + eps)
def _scatter_add(tgt, idx, src, axis=0):
    return tgt.clone().index_add_(axis, idx, src)
def _segment_sum(src, seg, n):
    out = torch.zeros((n,) + src.shape[1:], dtype=src.dtype)
    return out.index_add_(0, seg, src)
def _pad(x, pw):
    flat = tuple(v for pair in reversed(pw) for v in pair)
    return torch.nn.functional.pad(x, flat)

kernel_name = 'gated_mix__linear_kernel_hedgehog__glu_gated_bilinear__prompt'

def setup_inputs():

    _w = (lambda a: (lambda t: t.to(torch.bfloat16) if t.is_floating_point() else t)(torch.as_tensor(a)))
    def _A_setup():
        B, S, D, H = 1, 2048, 512, 32
        Dh = D // H
        return {
            "x": _w((lambda *s: torch.randn(*s, dtype=torch.bfloat16) * 0.05)(B, S, D)),
            "wqkv": _w((lambda *s: torch.randn(*s, dtype=torch.bfloat16) * 0.8)(D, 3 * D)),
            "w_phi": _w((lambda *s: torch.randn(*s, dtype=torch.bfloat16) * 0.8)(H, Dh, Dh) * (Dh ** -0.5)),
            "wo": _w((lambda *s: torch.randn(*s, dtype=torch.bfloat16) * 0.05)(D, D)),
        }
    _A_in = _A_setup()

    def _B_setup():
        B, S, D, F = 1, 2048, 512, 1376
        return {
            "x": _w((lambda *s: torch.randn(*s, dtype=torch.bfloat16) * 0.05)(B, S, D)),
            "w_gate": _w((lambda *s: torch.randn(*s, dtype=torch.bfloat16) * 1.6)(D, F) * (D ** -0.5)),
            "w_up": _w((lambda *s: torch.randn(*s, dtype=torch.bfloat16) * 1.6)(D, F) * (D ** -0.5)),
            "w_down": _w((lambda *s: torch.randn(*s, dtype=torch.bfloat16) * 1.6)(F, D) * (F ** -0.5)),
        }
    _B_in = _B_setup()

    return {
        "A_x": _A_in["x"],
        "A_wqkv": _A_in["wqkv"],
        "A_w_phi": _A_in["w_phi"],
        "A_wo": _A_in["wo"],
        "B_x": _B_in["x"],
        "B_w_gate": _B_in["w_gate"],
        "B_w_up": _B_in["w_up"],
        "B_w_down": _B_in["w_down"],
        "gate_w": _w((lambda *s: torch.randn(*s, dtype=torch.bfloat16) * 0.05)(512) * 16.0),
    }

def reference(A_x, A_wqkv, A_w_phi, A_wo, B_x, B_w_gate, B_w_up, B_w_down, gate_w):
    def _A_ref(x, wqkv, w_phi, wo):
        B, S, D = x.shape
        H = 32; Dh = D // H
        qkv = (lambda x, *d: x.permute(*d))((x @ wqkv).reshape(B, S, 3, H, Dh), 2, 0, 3, 1, 4)
        q, k, v = qkv[0], qkv[1], qkv[2]
        pq = torch.einsum("bhsd,hdf->bhsf", q, w_phi)
        pk = torch.einsum("bhsd,hdf->bhsf", k, w_phi)
        phi_q = torch.concatenate([_softmax(pq, axis=-1), _softmax(-pq, axis=-1)], axis=-1)
        phi_k = torch.concatenate([_softmax(pk, axis=-1), _softmax(-pk, axis=-1)], axis=-1)
        kv = torch.einsum("bhsf,bhsd->bhfd", phi_k, v)
        z  = torch.einsum("bhsf->bhf", phi_k)
        num = torch.einsum("bhqf,bhfd->bhqd", phi_q, kv)
        den = torch.einsum("bhqf,bhf->bhq", phi_q, z)[..., None] + 1e-6
        o = num / den
        return (lambda x, *d: x.permute(*d))(o, 0, 2, 1, 3).reshape(B, S, D) @ wo

    def _B_ref(x, w_gate, w_up, w_down):
        g = torch.einsum("bsd,df->bsf", x, w_gate)
        u = torch.einsum("bsd,df->bsf", x, w_up)
        h = g * u
        return torch.einsum("bsf,fd->bsd", h, w_down)

    x = A_x
    g = _sigmoid((x * gate_w).sum(-1, keepdims=True))
    a = _A_ref(x, A_wqkv, A_w_phi, A_wo)
    b = _B_ref(x, B_w_gate, B_w_up, B_w_down)
    return g * a + (1 - g) * b
```

```python
import sys
import numpy as np
HDR = """; @launch grid=(256,1,1) block=(256,1,1) lds=131072
.amdgcn_target "amdgcn-amd-amdhsa--gfx950"
.text
.globl bw_kernel
.p2align 8
.type bw_kernel,@function
bw_kernel:
"""
FTR = """
s_endpgm
.section .rodata,"a"
.p2align 6
.amdhsa_kernel bw_kernel
  .amdhsa_next_free_vgpr 256
  .amdhsa_next_free_sgpr 102
  .amdhsa_accum_offset 256
  .amdhsa_group_segment_fixed_size 0
  .amdhsa_kernarg_size 16
  .amdhsa_user_sgpr_count 2
  .amdhsa_user_sgpr_kernarg_segment_ptr 1
  .amdhsa_system_sgpr_workgroup_id_x 1
.end_amdhsa_kernel
"""
REGION = 1 << 21

def gen(seg_lanes, row_stride, step, mode, flags="", nload=16, iters=32, depth=8, wave_step=None):
    L = []
    a = L.append
    a("s_cmp_ge_u32 s2, 256\ns_cbranch_scc1 L_end")
    a("s_load_dwordx4 s[4:7], s[0:1], 0")
    a("v_and_b32 v1, 63, v0")
    a("v_lshrrev_b32 v2, 6, v0")
    a("s_nop 0")
    a("v_readfirstlane_b32 s20, v2")
    a(f"s_mov_b32 s21, {seg_lanes}")
    a("v_cvt_f32_u32 v3, v1")
    a(f"v_mov_b32 v4, {1.0/seg_lanes + 1e-6}")
    a("v_mul_f32 v3, v3, v4")
    a("v_cvt_u32_f32 v3, v3")
    a("v_mul_lo_u32 v4, v3, s21")
    a("v_sub_u32 v4, v1, v4")
    a(f"s_mov_b32 s22, {row_stride}")
    a("v_mul_lo_u32 v3, v3, s22")
    a("v_lshl_add_u32 v5, v4, 4, v3")
    a("s_waitcnt lgkmcnt(0)")
    a("s_mov_b32 s8, s4\ns_mov_b32 s9, s5")
    a(f"s_mov_b32 s10, {REGION*2}\ns_mov_b32 s11, 0x20000")
    a("s_mov_b32 s12, s6\ns_mov_b32 s13, s7\ns_mov_b32 s14, 65536\ns_mov_b32 s15, 0x20000")
    ws = wave_step if wave_step is not None else step * nload
    a(f"s_mul_i32 s23, s20, {ws}")
    a(f"s_lshr_b32 s24, s2, 3")
    a(f"s_mul_i32 s24, s24, {65536}")
    a("s_add_u32 s23, s23, s24")
    a(f"s_and_b32 s23, s23, {REGION-1}")
    a("s_lshl_b32 s25, s20, 15")
    a("s_mov_b32 s30, 0")
    a("L_pass:")
    a("s_barrier")
    a("s_memtime s[40:41]")
    a("s_memrealtime s[42:43]")
    a("s_waitcnt lgkmcnt(0)")
    a(f"s_mov_b32 s26, {iters}")
    a("s_mov_b32 s27, s23")
    a("L_loop:")
    for i in range(nload):
        if mode == "lds":
            a(f"s_add_u32 s28, s25, {i*1024}")
            a("s_mov_b32 m0, s28")
            a("s_nop 0")
            a(f"buffer_load_dwordx4 v5, s[8:11], s27 offen {flags} lds")
        else:
            r = 16 + 4 * i
            a(f"buffer_load_dwordx4 v[{r}:{r+3}], v5, s[8:11], s27 offen {flags}")
        a(f"s_add_u32 s27, s27, {step}")
        a(f"s_and_b32 s27, s27, {REGION-1}")
        if (i + 1) % 4 == 0:
            a(f"s_waitcnt vmcnt({depth})")
    a(f"s_add_u32 s27, s27, {(ws*4 - step*nload) & 0xffffffff}")
    a(f"s_and_b32 s27, s27, {REGION-1}")
    a("s_sub_u32 s26, s26, 1\ns_cmp_lg_u32 s26, 0\ns_cbranch_scc1 L_loop")
    a("s_waitcnt vmcnt(0)")
    a("s_barrier")
    a("s_memtime s[44:45]")
    a("s_memrealtime s[46:47]")
    a("s_waitcnt lgkmcnt(0)")
    a("s_add_u32 s30, s30, 1\ns_cmp_lt_u32 s30, 3\ns_cbranch_scc1 L_pass")
    a("s_sub_u32 s44, s44, s40\ns_sub_u32 s46, s46, s42")
    a("v_mov_b32 v8, s44\nv_mov_b32 v9, s46")
    a("s_lshl_b32 s31, s2, 3\nv_mov_b32 v10, s31")
    a("v_cmp_eq_u32 vcc, 0, v0\ns_and_saveexec_b64 s[50:51], vcc\ns_cbranch_execz L_end")
    a("buffer_store_dwordx2 v[8:9], v10, s[12:15], 0 offen")
    a("s_waitcnt vmcnt(0)")
    a("L_end:")
    return HDR + "\n".join(L) + FTR

CASES = [
    ("contig 1KB", dict(seg_lanes=64, row_stride=0, step=1024)),
    ("256B seg stride 3072", dict(seg_lanes=16, row_stride=3072, step=4*3072)),
    ("128B seg stride 3072", dict(seg_lanes=8, row_stride=3072, step=8*3072)),
    ("64B seg stride 3072", dict(seg_lanes=4, row_stride=3072, step=16*3072)),
    ("32B seg stride 3072", dict(seg_lanes=2, row_stride=3072, step=32*3072)),
    ("256B seg stride 2752", dict(seg_lanes=16, row_stride=2752, step=4*2752)),
    ("128B seg stride 2752", dict(seg_lanes=8, row_stride=2752, step=8*2752)),
    ("64B seg stride 2752", dict(seg_lanes=4, row_stride=2752, step=16*2752)),
    ("128B seg stride 1024", dict(seg_lanes=8, row_stride=1024, step=8*1024)),
    ("16B/lane stride 1024 walk row", dict(seg_lanes=1, row_stride=1024, step=16, wave_step=65536)),
    ("32B seg stride 1024 walk row", dict(seg_lanes=2, row_stride=1024, step=32, wave_step=32768)),
]

if __name__ == "__main__":
    if len(sys.argv) > 1 and sys.argv[1] == "asm":
        print(gen(**CASES[0][1], mode="lds"))
        raise SystemExit
    import rt
    src = rt.DeviceBuffer(REGION * 2)
    out = rt.DeviceBuffer(65536)
    rt.upload(src, np.random.randint(0, 2**31, REGION // 2, dtype=np.int32))
    for mode, flags in (("lds","sc1"),("lds","nt"),("lds","sc0 sc1"),("vgpr",""),("vgpr","sc1"),("vgpr","nt")):
        if True:
            for name, kw in CASES:
                if flags and name not in ("contig 1KB", "64B seg stride 3072", "128B seg stride 2752"):
                    continue
                for depth in ((8,) if flags else (4, 8, 12)):
                    asm = gen(mode=mode, flags=flags, depth=depth, **kw)
                    p = rt.Prog(asm, "bw_kernel", 2, "bw")
                    for _ in range(2):
                        p.launch([src.ptr, out.ptr]); rt.sync()
                    r = out.to_numpy(np.uint32, (256, 2)).astype(np.float64)
                    nbytes = 4 * 32 * 16 * 1024
                    cyc = np.median(r[:, 0]); t = np.median(r[:, 1]) * 10e-9
                    print(f"{mode:5s} {flags:4s} d{depth} {name:32s} {nbytes/cyc:6.1f} B/clk/CU  {nbytes/t/1e9:6.1f} GB/s/CU  clk {cyc/t/1e9:.2f} GHz  max/med {r[:,0].max()/cyc:.2f}")
                    p.k.unload()
```

```python
import sys
import numpy as np
import bw
def gen(per_cu_kb, share, xshare, depth, rot, touch=0):
    n = per_cu_kb // 4
    L = []; a = L.append
    a("s_cmp_ge_u32 s2, 256\ns_cbranch_scc1 L_end")
    a("s_memrealtime s[40:41]")
    a("s_load_dwordx4 s[4:7], s[0:1], 0")
    a("v_and_b32 v1, 63, v0\nv_lshrrev_b32 v2, 6, v0\ns_nop 0\nv_readfirstlane_b32 s20, v2")
    a("v_lshlrev_b32 v5, 4, v1\nv_lshlrev_b32 v6, 7, v0")
    a("s_waitcnt lgkmcnt(0)")
    a(f"s_mov_b32 s8, s4\ns_mov_b32 s9, s5\ns_mov_b32 s10, {1<<28}\ns_mov_b32 s11, 0x20000")
    a("s_mov_b32 s12, s6\ns_mov_b32 s13, s7\ns_mov_b32 s14, 65536\ns_mov_b32 s15, 0x20000")
    a("s_and_b32 s21, s2, 7\ns_lshr_b32 s22, s2, 3")
    a(f"s_and_b32 s29, s22, {share-1}")
    a(f"s_lshr_b32 s21, s21, {xshare.bit_length()-1}\ns_lshr_b32 s22, s22, {share.bit_length()-1}")
    a(f"s_mul_i32 s21, s21, {32//share}\ns_add_u32 s21, s21, s22\ns_mul_i32 s23, s21, {per_cu_kb*1024}")
    part = per_cu_kb * 1024 // share
    if touch:
        a(f"s_mul_i32 s33, s29, {part}\ns_add_u32 s33, s33, s23")
        for i in range(max(1, part // 32768)):
            a(f"buffer_load_dword v7, v6, s[8:11], s33 offen")
            a("s_add_u32 s33, s33, 32768")
    a(f"s_mul_i32 s32, s29, {part if rot else 0}")
    a("s_lshl_b32 s24, s20, 10\ns_add_u32 s23, s23, s24")
    a("s_lshl_b32 s25, s20, 15\ns_mov_b32 s28, 0")
    a(f"s_mov_b32 s26, {n}")
    a("L_loop:")
    a("s_add_u32 m0, s25, s28\ns_add_u32 s28, s28, 1024\ns_and_b32 s28, s28, 32767")
    a("s_add_u32 s27, s23, s32")
    a("buffer_load_dwordx4 v5, s[8:11], s27 offen lds")
    a(f"s_add_u32 s32, s32, 4096\ns_cmp_ge_u32 s32, {per_cu_kb*1024}\ns_cselect_b32 s32, 0, s32\ns_waitcnt vmcnt({depth//4})")
    a(f"s_cmp_eq_u32 s26, {n - depth//4}\ns_cbranch_scc0 L_nx\ns_memrealtime s[42:43]\ns_waitcnt lgkmcnt(0)\nL_nx:")
    a("s_sub_u32 s26, s26, 1\ns_cmp_lg_u32 s26, 0\ns_cbranch_scc1 L_loop")
    a("s_waitcnt vmcnt(0)\ns_barrier\ns_memrealtime s[44:45]\ns_waitcnt lgkmcnt(0)")
    a("v_mov_b32 v8, s40\nv_mov_b32 v9, s42\nv_mov_b32 v10, s44\nv_mov_b32 v11, 0")
    a("s_lshl_b32 s31, s2, 4\nv_mov_b32 v12, s31")
    a("v_cmp_eq_u32 vcc, 0, v0\ns_and_saveexec_b64 s[50:51], vcc\ns_cbranch_execz L_end")
    a("buffer_store_dwordx4 v[8:11], v12, s[12:15], 0 offen\ns_waitcnt vmcnt(0)")
    a("L_end:")
    return bw.HDR + "s_mov_b32 s42, 0\n" + "\n".join(L) + bw.FTR

def gen_reader():
    L = []; a = L.append
    a("s_cmp_ge_u32 s2, 256\ns_cbranch_scc1 L_end")
    a("s_load_dwordx4 s[4:7], s[0:1], 0\ns_waitcnt lgkmcnt(0)")
    a(f"s_mov_b32 s8, s4\ns_mov_b32 s9, s5\ns_mov_b32 s10, {512<<20}\ns_mov_b32 s11, 0x20000")
    a("v_lshlrev_b32 v5, 4, v0\ns_lshl_b32 s27, s2, 21\ns_mov_b32 s26, 512")
    a("L_loop:\nbuffer_load_dwordx4 v[8:11], v5, s[8:11], s27 offen\ns_add_u32 s27, s27, 4096\ns_waitcnt vmcnt(16)")
    a("s_sub_u32 s26, s26, 1\ns_cmp_lg_u32 s26, 0\ns_cbranch_scc1 L_loop\ns_waitcnt vmcnt(0)\nL_end:")
    return bw.HDR + "\n".join(L) + bw.FTR

if __name__ == "__main__":
    if len(sys.argv) > 1:
        print(gen(256, 8, 2, 96, 1, 1) if sys.argv[1] == "a" else gen_reader()); raise SystemExit
    import rt
    src = rt.DeviceBuffer(1 << 28); out = rt.DeviceBuffer(65536)
    big = rt.DeviceBuffer(512 << 20)
    small = rt.DeviceBuffer(48 << 20)
    rt.memset(src, 1); rt.sync()
    rd = rt.Prog(gen_reader(), "bw_kernel", 2, "reader")
    for per, share, xs, depth, rot, touch in ((256,8,2,96,0,0),(256,8,2,96,1,0),(256,8,2,96,0,1),(256,8,2,96,1,1),(256,4,4,96,1,0),(256,4,8,96,1,0),(256,4,8,96,0,1),
                                       (32,1,1,28,0,0),(64,1,1,60,0,0),(32,1,2,28,0,0),(64,1,2,60,0,0),(16,1,1,12,0,0)):
        p = rt.Prog(gen(per, share, xs, depth, rot, touch), "bw_kernel", 2, "cold")
        p.launch([src.ptr, out.ptr]); rt.sync()
        uniq = per * (256 // share // xs) / 1024
        for mode in ("dirty", "clean", "clean", "mall", "l2"):
            if mode == "dirty":
                rt.memset(big, 3); rt.sync()
            if mode == "clean":
                rd.launch([big.ptr, out.ptr]); rt.sync()
            if mode == "mall":
                rt.memset(small, 3); rt.sync()
            p.launch([src.ptr, out.ptr]); rt.sync()
            r = out.to_numpy(np.uint32, (256, 4)).astype(np.int64)
            t0 = r[:, 0].min()
            dur = (r[:, 2] - r[:, 0]) * 10
            end = (r[:, 2] - t0) * 10
            print(f"per={per}KB share={share} xshare={xs} depth={depth} rot={rot} touch={touch} uniq={uniq:.0f}MB {mode:5s}: own duration med {np.median(dur):.0f} max {dur.max()}; end max {end.max()} ns")
        p.k.unload()
```
